```python
import torch

def _softmax(x, axis=-1):
    return torch.softmax(x, dim=axis)
def _gelu(x):
    return torch.nn.functional.gelu(x, approximate="tanh")
def _silu(x):
    return torch.nn.functional.silu(x)
def _sigmoid(x):
    return torch.sigmoid(x)
def _layernorm(x, axis=-1, eps=1e-5):
    m = x.mean(dim=axis, keepdim=True)
    v = x.var(dim=axis, keepdim=True, unbiased=False)
    return (x - m) / torch.sqrt(v + eps)
def _scatter_add(tgt, idx, src, axis=0):
    return tgt.clone().index_add_(axis, idx, src)
def _segment_sum(src, seg, n):
    out = torch.zeros((n,) + src.shape[1:], dtype=src.dtype)
    return out.index_add_(0, seg, src)
def _pad(x, pw):
    flat = tuple(v for pair in reversed(pw) for v in pair)
    return torch.nn.functional.pad(x, flat)

kernel_name = 'interleave_layers__ssm_conv_h3__glu_gated_reglu__prompt'

def setup_inputs():

    _w = (lambda a: (lambda t: t.to(torch.bfloat16) if t.is_floating_point() else t)(torch.as_tensor(a)))
    def _A_setup():
        B, S, D = 1, 2048, 576
        ks = 4
        return {
            "q": _w((lambda *s: torch.randn(*s, dtype=torch.bfloat16) * 0.05)(B, S, D)),
            "k": _w((lambda *s: torch.randn(*s, dtype=torch.bfloat16) * 0.2)(B, S, D)),
            "v": _w((lambda *s: torch.randn(*s, dtype=torch.bfloat16) * 0.2)(B, S, D)),
            "shift_k": _w((lambda *s: torch.randn(*s, dtype=torch.bfloat16) * 0.2)(D, ks) * 0.5),
            "ssm_k": _w((lambda *s: torch.randn(*s, dtype=torch.bfloat16) * 0.4)(D, S) * (1.0 / S ** 0.5)),
            "ssm_D": _w((lambda *s: torch.randn(*s, dtype=torch.bfloat16) * 0.2)(D)),
        }
    _A_in = _A_setup()

    def _B_setup():
        B, S, D, F = 1, 2048, 576, 4608
        return {
            "x": _w((lambda *s: torch.randn(*s, dtype=torch.bfloat16) * 0.05)(B, S, D)),
            "W_gate": _w((lambda *s: torch.randn(*s, dtype=torch.bfloat16) * 0.2)(D, F) * (2.0 / D) ** 0.5),
            "W_up": _w((lambda *s: torch.randn(*s, dtype=torch.bfloat16) * 0.2)(D, F) * (2.0 / D) ** 0.5),
            "W_down": _w((lambda *s: torch.randn(*s, dtype=torch.bfloat16) * 0.2)(F, D) * (1.0 / F) ** 0.5),
        }
    _B_in = _B_setup()

    return {
        "A_q": _A_in["q"],
        "A_k": _A_in["k"],
        "A_v": _A_in["v"],
        "A_shift_k": _A_in["shift_k"],
        "A_ssm_k": _A_in["ssm_k"],
        "A_ssm_D": _A_in["ssm_D"],
        "B_x": _B_in["x"],
        "B_W_gate": _B_in["W_gate"],
        "B_W_up": _B_in["W_up"],
        "B_W_down": _B_in["W_down"],
    }

def reference(A_q, A_k, A_v, A_shift_k, A_ssm_k, A_ssm_D, B_x, B_W_gate, B_W_up, B_W_down):
    def _A_ref(q, k, v, shift_k, ssm_k, ssm_D):
        B, S, D = q.shape
        ks = shift_k.shape[-1]
        k_pad = _pad(k, ((0, 0), (ks - 1, 0), (0, 0)))
        k_shift = torch.zeros_like(k)
        for t in range(ks):
            k_shift = k_shift + k_pad[:, t:t + S, :] * shift_k[:, ks - 1 - t][None, None, :]
        kv = k_shift * v
        L = 2 * S
        kv_pad = _pad(kv, ((0, 0), (0, S), (0, 0)))
        kf_pad = _pad(ssm_k, ((0, 0), (0, S)))
        kv_f = (lambda x, axes=(-2,-1): torch.fft.rfft2(x.float(), dim=axes))(kv_pad[:, None, :, :], axes=(1, 2))
        kf_f = (lambda x, axes=(-2,-1): torch.fft.rfft2(x.float(), dim=axes))(kf_pad[:, None, :], axes=(1, 2))
        kf_f = (lambda x, *d: x.permute(*d))(kf_f, 1, 2, 0)
        y_f = kv_f * kf_f[None, :, :, :]
        y = (lambda x, s, axes=(-2,-1): torch.fft.irfft2(x, s=s, dim=axes).to(torch.bfloat16))(y_f, (1, L), axes=(1, 2))[:, 0, :S, :]
        y = y + kv * ssm_D[None, None, :]
        return q * y

    def _B_ref(x, W_gate, W_up, W_down):
        gate = torch.einsum("bsd,df->bsf", x, W_gate)
        up = torch.einsum("bsd,df->bsf", x, W_up)
        gate = gate * (lambda x, dt: x.to(dt))(gate > 0, gate.dtype)
        h = gate * up
        return torch.einsum("bsf,fd->bsd", h, W_down)

    x = A_q
    x = x + _A_ref(_layernorm(x, axis=-1), A_k, A_v, A_shift_k, A_ssm_k, A_ssm_D)
    x = x + _B_ref(_layernorm(x, axis=-1), B_W_gate, B_W_up, B_W_down)
    x = x + _A_ref(_layernorm(x, axis=-1), A_k, A_v, A_shift_k, A_ssm_k, A_ssm_D)
    x = x + _B_ref(_layernorm(x, axis=-1), B_W_gate, B_W_up, B_W_down)
    return x
```

```python
class Asm:
    def __init__(self):
        self.lines = []
        self.launches = []
        self.descs = []
        self.uid = 0
    def __call__(self, s=""):
        for l in s.split("\n"):
            self.lines.append("    " + l.strip() if l.strip() and not l.strip().endswith(":") else l.strip())
    def label(self, base="L"):
        self.uid += 1
        return "%s_%d" % (base, self.uid)
    def launch(self, kernel, grid, block, lds):
        self.launches.append("; @launch kernel=%s grid=(%d,1,1) block=(%d,1,1) lds=%d" % (kernel, grid, block, lds))
    def begin_kernel(self, name):
        self.lines += [".text", ".globl %s" % name, ".p2align 8", ".type %s,@function" % name, "%s:" % name]
    def end_kernel(self, name, vgpr, sgpr=102, accum=None, agpr=0):
        if accum is None:
            accum = (vgpr + 3) // 4 * 4
        nfv = accum + agpr if agpr else vgpr
        self.descs.append("\n".join([
            ".p2align 6",
            ".amdhsa_kernel %s" % name,
            "  .amdhsa_next_free_vgpr %d" % nfv,
            "  .amdhsa_next_free_sgpr %d" % sgpr,
            "  .amdhsa_accum_offset %d" % accum,
            "  .amdhsa_group_segment_fixed_size 0",
            "  .amdhsa_kernarg_size 104",
            "  .amdhsa_user_sgpr_count 2",
            "  .amdhsa_user_sgpr_kernarg_segment_ptr 1",
            "  .amdhsa_system_sgpr_workgroup_id_x 1",
            "  .amdhsa_float_denorm_mode_32 3",
            ".end_amdhsa_kernel"]))
    def text(self, header=""):
        out = []
        if header:
            out += ["; " + l for l in header.strip().split("\n")]
        out += self.launches
        out.append('.amdgcn_target "amdgcn-amd-amdhsa--gfx950"')
        out += self.lines
        out.append('.section .rodata,"a"')
        out += self.descs
        return "\n".join(out) + "\n"
```

```python
import re

TRANS = ("v_exp_", "v_log_", "v_rcp_", "v_rsq_", "v_sqrt_", "v_sin_", "v_cos_")

def parse_reg(tok):
    tok = tok.strip()
    tok = re.sub(r"^-|^\||\|$", "", tok)
    m = re.match(r"^abs\((.*)\)$", tok)
    if m: tok = m.group(1)
    m = re.match(r"^([vas])(\d+)$", tok)
    if m: return [(m.group(1), int(m.group(2)))]
    m = re.match(r"^([vas])\[(\d+):(\d+)\]$", tok)
    if m: return [(m.group(1), i) for i in range(int(m.group(2)), int(m.group(3)) + 1)]
    if tok in ("vcc", "vcc_lo", "vcc_hi"): return [("x", "vcc")]
    if tok in ("exec", "exec_lo", "exec_hi"): return [("x", "exec")]
    if tok == "m0": return [("x", "m0")]
    return []

class Ins:
    __slots__ = ("text", "op", "cls", "dst", "src", "srcC", "srcAB", "passes", "ws", "data", "dpp", "trans")
    def __init__(self, text):
        self.text = text
        t = text.split(";")[0].strip()
        parts = t.split(None, 1)
        self.op = op = parts[0]
        rest = parts[1] if len(parts) > 1 else ""
        ops = [o.strip() for o in rest.split(",")] if rest else []
        mods = ""
        if ops:
            l = ops[-1].split(None, 1)
            ops[-1] = l[0]
            mods = l[1] if len(l) > 1 else ""
        clean = []
        for o in ops:
            clean.append(o.split(None, 1)[0] if o else o)
        ops = clean
        R = [parse_reg(o) for o in ops]
        self.dst = set(); self.src = set(); self.srcC = set(); self.srcAB = set(); self.data = set()
        self.passes = 0; self.ws = 1; self.dpp = ("_dpp" in op or "row_" in rest or "quad_perm" in rest)
        self.trans = op.startswith(TRANS)
        flat = lambda L: set(x for l in L for x in l)
        if op == "s_nop":
            self.cls = "nop"; self.ws = int(ops[0], 0) + 1
        elif op.startswith("v_mfma"):
            self.cls = "mfma"
            self.passes = 8 if "32x32" in op else 4
            self.dst = set(R[0]); self.srcAB = set(R[1]) | set(R[2]); self.srcC = set(R[3]); self.src = self.srcAB | self.srcC
        elif op.startswith("v_"):
            self.cls = "valu"
            if op.startswith("v_cmp"):
                self.dst = set(R[0]); self.src = flat(R[1:])
                if op.startswith("v_cmpx"): self.dst.add(("x", "exec"))
            elif op.startswith(("v_add_co", "v_sub_co", "v_addc_co", "v_subb_co", "v_subrev_co")):
                self.dst = set(R[0]) | set(R[1]); self.src = flat(R[2:])
            elif "permlane" in op and "swap" in op:
                self.dst = set(R[0]) | set(R[1]); self.src = set(self.dst)
            else:
                self.dst = set(R[0]); self.src = flat(R[1:])
                if op.startswith(("v_fmac", "v_dot2c", "v_pk_fmac")) or self.dpp: self.src |= set(R[0])
                if op.startswith("v_writelane"): self.src |= set(R[0])
        elif op.startswith(("buffer_", "global_", "flat_")):
            self.cls = "vmem"
            if op in ("buffer_wbl2", "buffer_inv"):
                pass
            elif " lds" in (" " + rest + " ") and re.search(r"\blds\b", rest):
                self.src = flat(R) | {("x", "m0")}
                self.cls = "vmem_lds"
            elif "load" in op:
                self.dst = set(R[0]); self.src = flat(R[1:])
            elif "atomic" in op:
                if op.startswith("global") and re.search(r"\bsc0\b", rest):
                    self.dst = set(R[0]); self.src = flat(R[1:])
                else:
                    self.src = flat(R)
                    if re.search(r"\bsc0\b", rest): self.dst = set(R[0])
            else:
                self.src = flat(R)
                d = R[0] if op.startswith("buffer") else R[1]
                if len(d) >= 3: self.data = set(d)
        elif op.startswith("ds_"):
            self.cls = "ds"
            if op.startswith(("ds_read", "ds_bpermute", "ds_permute", "ds_swizzle")) or "_rtn" in op:
                self.dst = set(R[0]); self.src = flat(R[1:])
            else:
                self.src = flat(R)
        elif op.startswith("s_"):
            self.cls = "salu"
            if op.startswith(("s_cmp", "s_cbranch", "s_branch", "s_waitcnt", "s_barrier", "s_endpgm", "s_sleep", "s_setprio", "s_bitcmp")):
                self.src = flat(R)
            else:
                self.dst = set(R[0]) if R else set(); self.src = flat(R[1:])
                if "saveexec" in op: self.dst.add(("x", "exec"))
        else:
            raise ValueError("unknown instr: " + text)

def need(p, c):
    n = 0
    vec = lambda S: set(x for x in S if x[0] in "va")
    sca = lambda S: set(x for x in S if x[0] == "s" or x == ("x", "vcc"))
    if p.cls == "valu":
        wv = vec(p.dst); ws_ = sca(p.dst)
        if c.cls == "mfma" and wv & c.src: n = max(n, 2)
        if c.cls == "valu":
            if p.trans and wv & c.src: n = max(n, 1)
            if c.dpp and wv & c.src: n = max(n, 2)
            if "permlane" in c.op and wv & c.src: n = max(n, 2)
            if c.op.startswith(("v_readlane", "v_readfirstlane")) and wv & c.src: n = max(n, 1)
            if ws_ & c.src: n = max(n, 4 if c.op.startswith(("v_readlane", "v_writelane")) else 2)
            if "sdwa" in p.op and wv & (c.src | c.dst): n = max(n, 1)
        if c.cls in ("vmem", "vmem_lds") and ws_ & c.src: n = max(n, 5)
        if c.cls == "salu" and ws_ & c.src: n = max(n, 1)
        if ("x", "exec") in p.dst and (c.cls == "mfma" or c.dpp or "permlane" in c.op or "readlane" in c.op): n = max(n, 5)
    if p.cls == "mfma":
        big = 8 if p.passes == 4 else 12
        if c.cls == "mfma":
            if p.dst & c.srcAB: n = max(n, big)
            if p.dst & c.srcC and not (p.dst == c.srcC and p.passes == c.passes): n = max(n, big - 2)
            if p.dst & c.dst and not (p.dst == c.srcC): n = max(n, big)
        elif c.cls in ("valu", "vmem", "vmem_lds", "ds"):
            if p.dst & (c.src | c.dst): n = max(n, big)
            if c.cls == "valu" and p.srcC & c.dst: n = max(n, p.passes - 1)
    if p.cls == "salu" and ("x", "m0") in p.dst and c.cls == "vmem_lds": n = max(n, 1)
    if p.data and (p.data & c.dst): n = max(n, 2)
    return n

class K:
    def __init__(self, asm, name):
        self.asm = asm; self.name = name
        self.hist = []
        self.vm = []; self.lg = []
        self.nops = 0; self.count = 0
        asm.begin_kernel(name)
    def raw(self, s):
        self.asm.lines.append(s)
    def label(self, l):
        self.raw(l + ":")
    def e(self, text, tag=None):
        for line in text.split("\n"):
            line = line.strip()
            if not line: continue
            if line.endswith(":"):
                self.label(line[:-1]); continue
            ins = Ins(line)
            dist = 0; pad = 0
            for p in reversed(self.hist):
                nd = need(p, ins)
                if nd > dist: pad = max(pad, nd - dist)
                dist += p.ws
                if dist >= 12: break
            if pad:
                nop = Ins("s_nop %d" % (pad - 1))
                self.hist.append(nop); self.raw("    s_nop %d" % (pad - 1)); self.nops += 1
            self.hist.append(ins)
            if len(self.hist) > 16: self.hist.pop(0)
            self.raw("    " + line)
            self.count += 1
            if ins.cls in ("vmem", "vmem_lds") and ins.op not in ("buffer_wbl2", "buffer_inv"):
                self.vm.append(tag)
                assert len(self.vm) <= 63, "vmcnt overflow in %s: %d" % (self.name, len(self.vm))
            elif ins.cls == "ds":
                self.lg.append(tag)
            elif ins.op.startswith(("s_load", "s_buffer_load", "s_memtime", "s_memrealtime")):
                self.lg.append("SMEM")
            elif ins.op == "s_waitcnt":
                m = re.search(r"vmcnt\((\d+)\)", line)
                if m:
                    n = int(m.group(1)); self.vm = self.vm[len(self.vm) - n:] if n < len(self.vm) and n else ([] if n == 0 else self.vm)
                m = re.search(r"lgkmcnt\((\d+)\)", line)
                if m:
                    n = int(m.group(1)); self.lg = self.lg[len(self.lg) - n:] if n < len(self.lg) and n else ([] if n == 0 else self.lg)
    def _n(self, q, tags):
        if not isinstance(tags, (list, tuple, set)): tags = [tags]
        idx = [i for i, t in enumerate(q) if t in tags]
        if not idx: return None
        return len(q) - 1 - max(idx)
    def wait_str(self, vm=None, lg=None):
        parts = []
        if vm is not None:
            n = self._n(self.vm, vm)
            if n is not None: parts.append("vmcnt(%d)" % n)
        if lg is not None:
            n = self._n(self.lg, lg)
            if n is not None:
                if "SMEM" in self.lg: n = 0
                parts.append("lgkmcnt(%d)" % min(n, 15))
        return ("s_waitcnt " + " ".join(parts)) if parts else None
    def wait(self, vm=None, lg=None):
        s = self.wait_str(vm, lg)
        if s: self.e(s)
    def srd(self, d, base, size, off=0):
        if off:
            self.e("s_add_u32 s%d, s%d, 0x%x" % (d, base, off))
            self.e("s_addc_u32 s%d, s%d, 0" % (d + 1, base + 1))
        else:
            self.e("s_mov_b32 s%d, s%d" % (d, base))
            self.e("s_mov_b32 s%d, s%d" % (d + 1, base + 1))
        self.e("s_mov_b32 s%d, 0x%x" % (d + 2, size))
        self.e("s_mov_b32 s%d, 0x20000" % (d + 3))
    def end(self, vgpr, agpr=0, sgpr=96):
        self.asm.end_kernel(self.name, vgpr, sgpr=sgpr, agpr=agpr)
```

```python
import sys
from asmlib import Asm
from kgen import K

WP   = 0x0000000; WP_SZ = 8*4*486*1024
UR   = 0x1000000; UR_CH = 8448; UR_SZ = 576*UR_CH
YT   = 0x1800000; MAT = 2048*576*2
YF   = 0x1B00000
XF   = 0x1E00000
XN   = 0x2100000
PART = 0x2400000
WSZ = 576*4608*2
DIV9 = 0x1C71C71D

def vr(b, n=4): return "v[%d:%d]" % (b, b+n-1)
def ar(b, n=4): return "a[%d:%d]" % (b, b+n-1)

def wave_id(k, sreg, vtmp):
    k.e("v_lshrrev_b32 v%d, 6, v0" % vtmp)
    k.e("v_readfirstlane_b32 s%d, v%d" % (sreg, vtmp))

def divmod_const(k, q, r, x, d):
    magic = -(-(1 << 32) // d)
    k.e("s_mul_hi_u32 s%d, s%d, 0x%x" % (q, x, magic))
    k.e("s_mul_i32 s%d, s%d, %d" % (r, q, d))
    k.e("s_sub_u32 s%d, s%d, s%d" % (r, x, r))

def emit_prepack(k, wgreg):
    L = k.name
    k.e("s_load_dwordx4 s[16:19], s[0:1], 56")
    k.e("s_load_dwordx2 s[20:21], s[0:1], 72")
    k.e("s_load_dwordx2 s[22:23], s[0:1], 96")
    wave_id(k, 24, 1)
    k.e("v_and_b32 v2, 63, v0")
    k.e("s_lshl_b32 s25, s%d, 2" % wgreg)
    k.e("s_add_u32 s25, s25, s24")
    k.e("s_waitcnt lgkmcnt(0)")
    k.srd(12, 22, WP_SZ, WP)
    k.e("s_mov_b32 s10, 0x%x\ns_mov_b32 s11, 0x20000" % WSZ)
    k.e("s_cmp_ge_u32 s25, 864")
    k.e("s_cbranch_scc1 %s_pp_wd" % L)
    k.e("s_cmp_ge_u32 s25, 432")
    k.e("s_cselect_b32 s8, s18, s16")
    k.e("s_cselect_b32 s9, s19, s17")
    k.e("s_cselect_b32 s26, 1, 0")
    k.e("s_cselect_b32 s27, 432, 0")
    k.e("s_sub_u32 s25, s25, s27")
    divmod_const(k, 27, 28, 25, 72)
    k.e("s_mov_b32 s29, 9216")
    k.e("s_mul_i32 s30, s27, %d" % (96*9216))
    k.e("s_lshl_b32 s31, s28, 7")
    k.e("s_add_u32 s30, s30, s31")
    k.e("s_mul_i32 s31, s27, 6")
    k.e("s_add_u32 s31, s31, s26")
    for T in range(4):
        k.e("s_lshl_b32 s32, s28, 2")
        k.e("s_add_u32 s32, s32, %d" % T)
        divmod_const(k, 33, 34, 32, 9)
        k.e("s_mul_i32 s33, s33, 486")
        k.e("s_mul_i32 s34, s34, 36")
        k.e("s_add_u32 s33, s33, s34")
        k.e("s_add_u32 s33, s33, s31")
        k.e("s_lshl_b32 s%d, s33, 10" % (36+T))
        k.e("s_mov_b32 s%d, 2048" % (40+T))
    k.e("s_branch %s_pp_go" % L)
    k.label("%s_pp_wd" % L)
    k.e("s_mov_b32 s8, s20\ns_mov_b32 s9, s21")
    k.e("s_sub_u32 s25, s25, 864")
    divmod_const(k, 27, 28, 25, 9)
    k.e("s_mov_b32 s29, 1152")
    k.e("s_mul_i32 s30, s27, %d" % (96*1152))
    k.e("s_lshl_b32 s31, s28, 7")
    k.e("s_add_u32 s30, s30, s31")
    divmod_const(k, 26, 31, 27, 6)
    k.e("s_mul_i32 s31, s31, 3")
    k.e("s_mul_i32 s26, s26, %d" % (4*486))
    k.e("s_add_u32 s26, s26, 324")
    for T in range(4):
        half = T & 1
        k.e("s_lshl_b32 s32, s28, 1")
        k.e("s_add_u32 s32, s32, %d" % (T >> 1))
        divmod_const(k, 33, 34, 32, 9)
        k.e("s_mul_i32 s33, s33, %d" % (2*486))
        k.e("s_add_u32 s33, s33, s26")
        k.e("s_mul_i32 s35, s34, 36")
        k.e("s_cmp_gt_u32 s34, 4")
        k.e("s_cselect_b32 s44, %d, 0" % (486 - 180))
        k.e("s_add_u32 s35, s35, s44")
        k.e("s_lshl_b32 s44, s31, 1")
        k.e("s_add_u32 s35, s35, s44")
        k.e("s_add_u32 s35, s35, %d" % half)
        k.e("s_add_u32 s44, s31, %d" % (half*486 + 144))
        k.e("s_cmp_eq_u32 s34, 4")
        k.e("s_cselect_b32 s35, s44, s35")
        k.e("s_cselect_b32 s%d, 1, 2" % (40+T))
        k.e("s_lshl_b32 s%d, s%d, 10" % (40+T, 40+T))
        k.e("s_add_u32 s33, s33, s35")
        k.e("s_lshl_b32 s%d, s33, 10" % (36+T))
    k.label("%s_pp_go" % L)
    k.e("v_lshrrev_b32 v3, 3, v2")
    k.e("v_mul_lo_u32 v3, v3, s29")
    k.e("v_and_b32 v4, 7, v2")
    k.e("v_lshl_add_u32 v3, v4, 4, v3")
    k.e("s_mul_i32 s45, s24, 12288")
    k.e("s_lshl_b32 s46, s29, 3")
    for i in range(12):
        k.e("s_add_u32 m0, s45, %d" % (i*1024))
        k.e("buffer_load_dwordx4 v3, s[8:11], s30 offen lds", tag="u%d" % (i//4))
        k.e("s_add_u32 s30, s30, s46")
    k.e("v_lshrrev_b32 v4, 4, v2")
    k.e("v_lshlrev_b32 v4, 10, v4")
    k.e("v_bfe_u32 v5, v2, 2, 2")
    k.e("v_lshl_add_u32 v4, v5, 7, v4")
    k.e("v_and_b32 v5, 3, v2")
    k.e("v_lshl_add_u32 v4, v5, 4, v4")
    k.e("v_add_u32 v4, s45, v4")
    k.e("v_lshlrev_b32 v6, 4, v2")
    for u in range(3):
        k.wait(vm="u%d" % u)
        for T in range(4):
            o = u*4096 + 64*(T >> 1) + 8*(T & 1)
            r = 8 + 16*u + 4*T
            k.e("ds_read_b64_tr_b16 %s, v4 offset:%d" % (vr(r, 2), o), tag="t%d" % T)
            k.e("ds_read_b64_tr_b16 %s, v4 offset:%d" % (vr(r+2, 2), o+512), tag="t%d" % T)
        for T in range(4):
            r = 8 + 16*u + 4*T
            k.wait(lg="t%d" % T)
            k.e("buffer_store_dwordx4 %s, v6, s[12:15], s%d offen" % (vr(r), 36+T), tag="st")
            k.e("s_add_u32 s%d, s%d, s%d" % (36+T, 36+T, 40+T))
    k.e("s_endpgm")

def gen_s1(a):
    k = K(a, "s1_kernel")
    a.launch("s1_kernel", 144+324, 256, 49152)
    k.e("s_cmp_ge_u32 s2, 144")
    k.e("s_cbranch_scc1 s1_pp")
    k.e("s_load_dwordx4 s[16:19], s[0:1], 8")
    k.e("s_load_dwordx2 s[20:21], s[0:1], 24")
    k.e("s_load_dwordx2 s[22:23], s[0:1], 96")
    wave_id(k, 24, 1)
    divmod_const(k, 25, 26, 2, 9)
    k.e("s_and_b32 s27, s24, 1")
    k.e("s_lshl_b32 s26, s26, 1")
    k.e("s_add_u32 s26, s26, s27")
    k.e("s_lshr_b32 s27, s24, 1")
    k.e("s_lshl_b32 s25, s25, 1")
    k.e("s_add_u32 s25, s25, s27")
    k.e("v_and_b32 v1, 7, v0")
    k.e("v_bfe_u32 v2, v0, 3, 3")
    k.e("s_lshl_b32 s27, s25, 3")
    k.e("v_add_u32 v3, s27, v2")
    k.e("s_lshl_b32 s27, s26, 5")
    k.e("v_lshl_add_u32 v4, v1, 2, s27")
    k.e("v_mul_u32_u24 v5, 9216, v3")
    k.e("v_lshl_add_u32 v5, v4, 1, v5")
    k.e("v_subrev_u32 v6, 4608, v5")
    k.e("v_mov_b32 v7, 0x80000000")
    k.e("v_cmp_eq_u32 vcc, 0, v3")
    k.e("v_cndmask_b32 v6, v6, v7, vcc")
    k.e("v_lshlrev_b32 v7, 3, v4")
    k.e("s_mov_b32 s28, 4608")
    k.e("s_waitcnt lgkmcnt(0)")
    k.srd(8, 16, MAT); k.srd(12, 18, MAT); k.srd(32, 20, 576*8); k.srd(36, 22, UR_SZ, UR)
    KR = 16; VR = 40; WR = 60
    k.e("buffer_load_dwordx4 %s, v7, s[32:35], 0 offen" % vr(WR), tag="w")
    k.e("buffer_load_dwordx4 %s, v7, s[32:35], 0 offen offset:16" % vr(WR+4), tag="w")
    for i in range(12):
        va, so = ("v6", "0") if i < 4 else (("v5", "0") if i < 8 else ("v5", "s28"))
        k.e("buffer_load_dwordx2 %s, %s, s[8:11], %s offen offset:%d" % (vr(KR+2*i, 2), va, so, (i % 4)*1152), tag="k")
    for j in range(9):
        i = j + 3
        va, so = ("v6", "0") if i < 4 else (("v5", "0") if i < 8 else ("v5", "s28"))
        k.e("buffer_load_dwordx2 %s, %s, s[12:15], %s offen offset:%d" % (vr(VR+2*j, 2), va, so, (i % 4)*1152), tag="v")
    k.e("v_mul_u32_u24 v8, %d, v4" % UR_CH)
    k.e("v_sub_u32 v9, 255, v3")
    k.e("v_lshl_add_u32 v9, v9, 4, v8")
    k.e("s_cmp_lg_u32 s25, 0")
    k.e("s_cbranch_scc1 s1_nopad")
    k.e("v_lshl_add_u32 v10, v2, 4, v8")
    k.e("v_add_u32 v10, 4096, v10")
    for i in range(4): k.e("v_mov_b32 v%d, 0" % (12+i))
    sv = list(k.vm)
    for c in range(4):
        for cp in range(2):
            k.e("s_mov_b32 s29, %d" % (c*UR_CH + cp*4224))
            k.e("buffer_store_dwordx4 v[12:15], v10, s[36:39], s29 offen")
    k.e("s_waitcnt vmcnt(0)")
    k.label("s1_nopad")
    k.vm = sv
    WF = 68
    k.wait(vm="w")
    for c in range(4):
        for tap in range(4):
            src = WR + 2*c + (tap >> 1); dst = WF + ((c >> 1)*4 + tap)*2 + (c & 1)
            k.e(("v_and_b32 v%d, 0xffff0000, v%d" if tap & 1 else "v_lshlrev_b32 v%d, 16, v%d") % (dst, src))
    KF = 84
    VF = 108
    U = 126
    O = 144
    for cp in range(2):
        k.wait(vm="k")
        for i in range(12):
            k.e("v_lshlrev_b32 v%d, 16, v%d" % (KF+2*i, KR+2*i+cp))
            k.e("v_and_b32 v%d, 0xffff0000, v%d" % (KF+2*i+1, KR+2*i+cp))
        w = lambda tap: vr(WF + (cp*4+tap)*2, 2)
        for j in range(9):
            k.e("v_pk_mul_f32 %s, %s, %s" % (vr(U+2*j, 2), vr(KF+2*j, 2), w(3)))
        for tap in (2, 1, 0):
            for j in range(9):
                k.e("v_pk_fma_f32 %s, %s, %s, %s" % (vr(U+2*j, 2), vr(KF+2*(j+3-tap), 2), w(tap), vr(U+2*j, 2)))
        for j in range(18):
            k.e("v_cvt_pk_bf16_f32 v%d, 0, v%d" % (U+j, U+j))
        k.wait(vm="v")
        for j in range(9):
            k.e("v_lshlrev_b32 v%d, 16, v%d" % (VF+2*j, VR+2*j+cp))
            k.e("v_and_b32 v%d, 0xffff0000, v%d" % (VF+2*j+1, VR+2*j+cp))
        for j in range(9):
            k.e("v_pk_mul_f32 %s, %s, %s" % (vr(U+2*j, 2), vr(U+2*j, 2), vr(VF+2*j, 2)))
        for h in range(2):
            for copy in range(2):
                o = O + cp*16 + (h*2+copy)*4
                for d in range(4):
                    j = 8 - copy - 2*d
                    k.e("v_cvt_pk_bf16_f32 v%d, v%d, v%d" % (o+d, U+2*j+h, U+2*(j-1)+h))
                k.e("s_mov_b32 s29, %d" % ((cp*2+h)*UR_CH + copy*4224))
                k.e("buffer_store_dwordx4 %s, v9, s[36:39], s29 offen" % vr(o))
    k.e("s_endpgm")
    k.label("s1_pp")
    k.vm = []; k.lg = []
    k.e("s_sub_u32 s3, s2, 144")
    k.e("s_cmp_ge_u32 s3, 324")
    k.e("s_cbranch_scc1 s1_end")
    emit_prepack(k, 3)
    k.label("s1_end")
    k.e("s_endpgm")
    k.end(176)

def gen_s2(a):
    k = K(a, "s2_kernel")
    a.launch("s2_kernel", 144, 256, 4*4608)
    k.e("s_cmp_ge_u32 s2, 144")
    k.e("s_cbranch_scc1 s2_end")
    k.e("s_load_dwordx4 s[16:19], s[0:1], 32")
    k.e("s_load_dwordx2 s[22:23], s[0:1], 96")
    wave_id(k, 24, 1)
    k.e("v_and_b32 v2, 63, v0")
    k.e("v_and_b32 v3, 15, v0")
    k.e("v_bfe_u32 v4, v0, 4, 2")
    k.e("s_lshl_b32 s25, s2, 2")
    k.e("s_add_u32 s25, s25, s24")
    k.e("s_mul_i32 s26, s24, 4608")
    k.e("s_lshl_b32 s27, s25, 12")
    k.e("s_mul_i32 s28, s25, %d" % UR_CH)
    k.e("v_lshlrev_b32 v5, 3, v4")
    k.e("v_sub_u32 v5, v5, v3")
    k.e("v_add_u32 v5, 15, v5")
    k.e("v_lshlrev_b32 v5, 1, v5")
    k.e("v_and_b32 v6, 1, v3")
    k.e("v_xor_b32 v6, 1, v6")
    k.e("v_mul_u32_u24 v6, 4222, v6")
    k.e("v_add_u32 v5, v5, v6")
    k.e("v_lshlrev_b32 v7, 4, v2")
    k.e("v_lshlrev_b32 v8, 5, v3")
    k.e("v_lshl_add_u32 v8, v4, 4, v8")
    k.e("v_add_u32 v8, s26, v8")
    k.e("v_add_u32 v8, 32, v8")
    k.e("v_lshlrev_b32 v9, 3, v2")
    k.e("v_add_u32 v9, s26, v9")
    k.e("v_mov_b32 v10, 0\nv_mov_b32 v11, 0")
    k.e("s_waitcnt lgkmcnt(0)")
    k.e("ds_write_b64 v9, v[10:11]", tag="z")
    k.srd(8, 16, MAT); k.srd(12, 22, UR_SZ, UR); k.srd(32, 22, MAT, YT); k.srd(36, 18, 576*2)
    k.e("s_add_u32 m0, s26, 512")
    for i in range(4):
        k.e("buffer_load_dwordx4 v7, s[8:11], s27 offen offset:%d lds" % (i*1024), tag="h")
    def loadA(r):
        for i in range(8):
            kap = 8*i + r
            k.e("buffer_load_dwordx4 %s, v5, s[12:15], s28 offen offset:%d" % (ar(4*(8*r+i)), 64*(63-kap)), tag="A%d" % r)
    for r in range(5): loadA(r)
    k.e("v_lshlrev_b32 v12, 5, v3")
    k.e("v_lshl_add_u32 v12, v4, 3, v12")
    k.e("v_sub_u32 v13, %d, v12" % (4088 - 3584))
    UE = 16
    for c in range(8):
        k.e("buffer_load_dwordx2 %s, v13, s[12:15], s28 offen offset:%d" % (vr(UE+2*c, 2), 512*(7-c)), tag="ue")
    k.e("s_lshl_b32 s29, s25, 1")
    k.e("v_mov_b32 v14, 0")
    k.e("buffer_load_ushort v15, v14, s[36:39], s29 offen", tag="ue")
    ACC = 32; BB = 64
    def readB(r, d):
        g = 8*d - r
        return "ds_read_b128 %s, v8 offset:%d" % (vr(BB + 32*(r & 1) + 4*d), 64*(g+7))
    k.wait(vm="h", lg="z")
    for d in range(8): k.e(readB(0, d), tag="B0")
    first = set()
    for r in range(8):
        if r + 5 < 8: loadA(r + 5)
        k.wait(vm="A%d" % r, lg="B%d" % r)
        n = 0
        pend = [readB(r+1, d) for d in range(8)] if r < 7 else []
        for i in range(8):
            for c in range(i, 8):
                d = c - i
                cc = vr(ACC+4*c) if c in first else "0"
                first.add(c)
                k.e("v_mfma_f32_16x16x32_bf16 %s, %s, %s, %s" % (vr(ACC+4*c), ar(4*(8*r+i)), vr(BB + 32*(r & 1) + 4*d), cc))
                n += 1
                if n % 2 == 0 and pend: k.e(pend.pop(0), tag="B%d" % (r+1))
    k.wait(vm="ue")
    k.e("v_lshlrev_b32 v15, 16, v15")
    T = 128
    for c in range(8):
        t = T + 8*(c & 1)
        k.e("v_and_b32 v%d, 0xffff0000, v%d" % (t+0, UE+2*c+1))
        k.e("v_lshlrev_b32 v%d, 16, v%d" % (t+1, UE+2*c+1))
        k.e("v_and_b32 v%d, 0xffff0000, v%d" % (t+2, UE+2*c))
        k.e("v_lshlrev_b32 v%d, 16, v%d" % (t+3, UE+2*c))
        for i in range(4): k.e("v_mul_f32 v%d, v%d, v15" % (t+i, t+i))
        for i in range(4): k.e("v_cvt_pk_bf16_f32 v%d, 0, v%d" % (t+i, t+i))
        for i in range(4): k.e("v_cvt_pk_bf16_f32 v%d, 0, v%d" % (ACC+4*c+i, ACC+4*c+i))
        for i in range(4): k.e("v_add_f32 v%d, v%d, v%d" % (t+i, t+i, ACC+4*c+i))
        k.e("v_cvt_pk_bf16_f32 v%d, v%d, v%d" % (t+4, t, t+1))
        k.e("v_cvt_pk_bf16_f32 v%d, v%d, v%d" % (t+5, t+2, t+3))
        k.e("buffer_store_dwordx2 %s, v12, s[32:35], s27 offen offset:%d" % (vr(t+4, 2), 512*c))
    k.label("s2_end")
    k.e("s_endpgm")
    k.end(144, agpr=256)

def unpack8(k, dst, src):
    for i in range(4):
        k.e("v_lshlrev_b32 v%d, 16, v%d" % (dst+2*i, src+i))
        k.e("v_and_b32 v%d, 0xffff0000, v%d" % (dst+2*i+1, src+i))
def pack8(k, dst, src):
    for i in range(4):
        k.e("v_cvt_pk_bf16_f32 v%d, v%d, v%d" % (dst+i, src+2*i, src+2*i+1))
def round8(k, r):
    for i in range(8): k.e("v_cvt_pk_bf16_f32 v%d, 0, v%d" % (r+i, r+i))

def ln_stats(k, x, T, vwr, vrd, ldsoff):
    mu, m2, a, b, c, d = T, T+1, T+2, T+3, T+4, T+5
    D = T + 8
    k.e("v_pk_add_f32 %s, %s, %s" % (vr(D, 2), vr(x, 2), vr(x+2, 2)))
    k.e("v_pk_add_f32 %s, %s, %s" % (vr(D+2, 2), vr(x+4, 2), vr(x+6, 2)))
    k.e("v_pk_add_f32 %s, %s, %s" % (vr(D, 2), vr(D, 2), vr(D+2, 2)))
    k.e("v_add_f32 v%d, v%d, v%d" % (mu, D, D+1))
    k.e("v_mul_f32 v%d, 0x3e000000, v%d" % (mu, mu))
    for i in range(4):
        k.e("v_pk_add_f32 %s, %s, %s op_sel_hi:[1,0] neg_lo:[0,1] neg_hi:[0,1]" % (vr(D+2*i, 2), vr(x+2*i, 2), vr(mu, 2)))
    k.e("v_pk_mul_f32 %s, %s, %s" % (vr(a, 2), vr(D, 2), vr(D, 2)))
    for i in range(1, 4):
        k.e("v_pk_fma_f32 %s, %s, %s, %s" % (vr(a, 2), vr(D+2*i, 2), vr(D+2*i, 2), vr(a, 2)))
    k.e("v_add_f32 v%d, v%d, v%d" % (m2, a, b))
    k.e("v_mov_b32_dpp v%d, v%d row_ror:8 row_mask:0xf bank_mask:0xf" % (a, mu))
    k.e("v_add_f32_dpp v%d, v%d, v%d row_ror:8 row_mask:0xf bank_mask:0xf" % (b, m2, m2))
    k.e("v_sub_f32 v%d, v%d, v%d" % (c, mu, a))
    k.e("v_add_f32 v%d, v%d, v%d" % (mu, mu, a))
    k.e("v_mul_f32 v%d, v%d, v%d" % (c, c, c))
    k.e("v_mul_f32 v%d, 0.5, v%d" % (mu, mu))
    k.e("v_fma_f32 v%d, v%d, 4.0, v%d" % (m2, c, b))
    for op, n2 in (("v_permlane16_swap_b32", 0x41000000), ("v_permlane32_swap_b32", 0x41800000)):
        k.e("v_mov_b32 v%d, v%d" % (a, mu))
        k.e("v_mov_b32 v%d, v%d" % (b, m2))
        k.e("%s v%d, v%d" % (op, mu, a))
        k.e("%s v%d, v%d" % (op, m2, b))
        k.e("v_sub_f32 v%d, v%d, v%d" % (c, mu, a))
        k.e("v_add_f32 v%d, v%d, v%d" % (mu, mu, a))
        k.e("v_add_f32 v%d, v%d, v%d" % (m2, m2, b))
        k.e("v_mul_f32 v%d, v%d, v%d" % (c, c, c))
        k.e("v_mul_f32 v%d, 0.5, v%d" % (mu, mu))
        k.e("v_fmac_f32 v%d, 0x%x, v%d" % (m2, n2, c))
    k.e("s_mov_b64 exec, 0xff")
    k.e("ds_write_b64 v%d, %s offset:%d" % (vwr, vr(mu, 2), ldsoff))
    k.e("s_mov_b64 exec, -1")
    k.e("s_waitcnt lgkmcnt(0)")
    k.e("s_barrier")
    S = T + 8
    for i in range(4):
        k.e("ds_read_b128 %s, v%d offset:%d" % (vr(S+4*i), vrd, ldsoff + 16*i))
    k.e("ds_read_b64 %s, v%d offset:%d" % (vr(S+16, 2), vrd, ldsoff + 64))
    k.e("s_waitcnt lgkmcnt(0)")
    k.e("v_pk_add_f32 %s, %s, %s" % (vr(mu, 2), vr(S, 2), vr(S+2, 2)))
    k.e("v_pk_add_f32 %s, %s, %s" % (vr(a, 2), vr(S+4, 2), vr(S+6, 2)))
    k.e("v_pk_add_f32 %s, %s, %s" % (vr(c, 2), vr(S+8, 2), vr(S+10, 2)))
    k.e("v_pk_add_f32 %s, %s, %s" % (vr(T+6, 2), vr(S+12, 2), vr(S+14, 2)))
    k.e("v_pk_add_f32 %s, %s, %s" % (vr(mu, 2), vr(mu, 2), vr(S+16, 2)))
    k.e("v_pk_add_f32 %s, %s, %s" % (vr(a, 2), vr(a, 2), vr(c, 2)))
    k.e("v_pk_add_f32 %s, %s, %s" % (vr(mu, 2), vr(mu, 2), vr(T+6, 2)))
    k.e("v_pk_add_f32 %s, %s, %s" % (vr(mu, 2), vr(mu, 2), vr(a, 2)))
    k.e("v_mul_f32 v%d, 0x3de38e39, v%d" % (mu, mu))
    for i in range(9):
        k.e("v_sub_f32 v%d, v%d, v%d" % (S+2*i, S+2*i, mu))
    k.e("v_mul_f32 v%d, v%d, v%d" % (a, S, S))
    k.e("v_mul_f32 v%d, v%d, v%d" % (b, S+2, S+2))
    for i in range(2, 9):
        k.e("v_fmac_f32 v%d, v%d, v%d" % (a if i % 2 == 0 else b, S+2*i, S+2*i))
    k.e("v_add_f32 v%d, v%d, v%d" % (a, a, b))
    k.e("v_fmac_f32 v%d, 0x42800000, v%d" % (m2, a))
    k.e("v_mul_f32 v%d, 0x3ae38e39, v%d" % (m2, m2))
    k.e("v_cvt_pk_bf16_f32 v%d, 0, v%d" % (mu, mu))
    k.e("v_cvt_pk_bf16_f32 v%d, 0, v%d" % (m2, m2))
    k.e("v_add_f32 v%d, 0x3727c5ac, v%d" % (m2, m2))
    k.e("v_cvt_pk_bf16_f32 v%d, 0, v%d" % (m2, m2))
    k.e("v_sqrt_f32 v%d, v%d" % (m2, m2))
    k.e("v_cvt_pk_bf16_f32 v%d, 0, v%d" % (m2, m2))
    k.e("v_rcp_f32 v%d, v%d" % (m2, m2))

def ln_apply(k, dst, x, T):
    for i in range(4):
        k.e("v_pk_add_f32 %s, %s, %s op_sel_hi:[1,0] neg_lo:[0,1] neg_hi:[0,1]" % (vr(dst+2*i, 2), vr(x+2*i, 2), vr(T, 2)))
    round8(k, dst)
    for i in range(4):
        k.e("v_pk_mul_f32 %s, %s, %s op_sel:[0,1] op_sel_hi:[1,1]" % (vr(dst+2*i, 2), vr(dst+2*i, 2), vr(T, 2)))

def gen_row(a, which):
    name = "s%d_kernel" % which
    k = K(a, name)
    k.e("s_cmp_ge_u32 s2, 256")
    k.e("s_cbranch_scc1 %s_end" % name)
    k.e("s_load_dwordx2 s[22:23], s[0:1], 96")
    if which == 3: k.e("s_load_dwordx2 s[16:17], s[0:1], 0")
    if which == 5: k.e("s_load_dwordx2 s[16:17], s[0:1], 80")
    k.e("v_and_b32 v1, 7, v0")
    k.e("v_lshrrev_b32 v2, 3, v0")
    k.e("s_lshr_b32 s24, s2, 1")
    k.e("s_mul_i32 s24, s24, 18432")
    k.e("s_and_b32 s25, s2, 1")
    k.e("s_lshl_b32 s25, s25, 7")
    k.e("s_add_u32 s24, s24, s25")
    k.e("v_lshlrev_b32 v3, 8, v2")
    k.e("v_lshl_add_u32 v3, v1, 4, v3")
    k.e("v_add_u32 v3, s24, v3")
    if which in (3, 5):
        k.e("s_mul_i32 s26, s2, 9216")
        k.e("v_mul_u32_u24 v4, 1152, v1")
        k.e("v_lshl_add_u32 v4, v2, 4, v4")
    k.e("v_lshrrev_b32 v5, 6, v0")
    k.e("v_mul_u32_u24 v7, 80, v1")
    k.e("v_lshl_add_u32 v6, v5, 3, v7")
    k.e("s_waitcnt lgkmcnt(0)")
    X = 16; Y = 24; L = 32; T = 40; IN = 72
    k.srd(12, 22, MAT, XF)
    if which != 5:
        k.srd(32, 22, MAT, XN); k.srd(36, 22, MAT, YF)
    if which == 3:
        k.srd(8, 16, MAT); k.srd(40, 22, MAT, YT)
        k.e("v_readfirstlane_b32 s27, v5")
        k.e("v_lshlrev_b32 v8, 12, v0")
        k.e("s_lshl_b32 s28, s2, 4")
        k.e("s_lshl_b32 s27, s27, 10")
        k.e("s_add_u32 s27, s27, 2048")
        k.e("s_mov_b32 m0, s27")
        k.e("buffer_load_dwordx4 %s, v4, s[8:11], s26 offen" % vr(IN), tag="x")
        k.e("buffer_load_dwordx4 v8, s[40:43], s28 offen lds", tag="y")
        k.e("v_bfe_u32 v9, v0, 4, 2")
        k.e("v_lshlrev_b32 v9, 8, v9")
        k.e("v_bfe_u32 v10, v0, 1, 1")
        k.e("v_lshl_add_u32 v9, v10, 7, v9")
        k.e("v_bfe_u32 v10, v0, 2, 2")
        k.e("v_lshl_add_u32 v9, v10, 4, v9")
        k.e("v_and_b32 v10, 1, v0")
        k.e("v_lshl_add_u32 v9, v10, 3, v9")
        k.e("v_add_u32 v9, s27, v9")
        k.wait(vm="x")
        unpack8(k, X, IN)
    else:
        k.srd(8, 22, 8*MAT, PART)
        for j in range(8):
            k.e("s_mov_b32 s27, %d" % (j*MAT))
            k.e("buffer_load_dwordx4 %s, v3, s[8:11], s27 offen" % vr(IN+8+4*j), tag="p%d" % j)
        k.e("buffer_load_dwordx4 %s, v3, s[12:15], 0 offen" % vr(IN), tag="x")
        if which == 4:
            k.e("buffer_load_dwordx4 %s, v3, s[36:39], 0 offen" % vr(IN+4), tag="y")
        for j in range(8):
            k.wait(vm="p%d" % j)
            if j == 0:
                unpack8(k, L, IN+8)
            else:
                unpack8(k, T, IN+8+4*j)
                for i in range(4):
                    k.e("v_pk_add_f32 %s, %s, %s" % (vr(L+2*i, 2), vr(L+2*i, 2), vr(T+2*i, 2)))
        round8(k, L)
        k.wait(vm="x")
        unpack8(k, X, IN)
        for i in range(4):
            k.e("v_pk_add_f32 %s, %s, %s" % (vr(X+2*i, 2), vr(X+2*i, 2), vr(L+2*i, 2)))
        if which == 5:
            k.srd(8, 16, MAT)
            pack8(k, IN, X)
            k.e("buffer_store_dwordx4 %s, v4, s[8:11], s26 offen" % vr(IN))
        else:
            round8(k, X)
    if which != 5:
        ln_stats(k, X, T, 6, 7, 0)
        ln_apply(k, L, X, T)
        round8(k, L)
        k.wait(vm="y")
        if which == 3:
            k.e("ds_read_b64_tr_b16 %s, v9" % vr(IN+4, 2))
            k.e("ds_read_b64_tr_b16 %s, v9 offset:64" % vr(IN+6, 2))
            k.e("s_waitcnt lgkmcnt(0)")
            k.e("buffer_store_dwordx4 %s, v3, s[36:39], 0 offen" % vr(IN+4))
        unpack8(k, Y, IN+4)
        for i in range(4):
            k.e("v_pk_mul_f32 %s, %s, %s" % (vr(L+2*i, 2), vr(L+2*i, 2), vr(Y+2*i, 2)))
        round8(k, L)
        for i in range(4):
            k.e("v_pk_add_f32 %s, %s, %s" % (vr(X+2*i, 2), vr(X+2*i, 2), vr(L+2*i, 2)))
        pack8(k, IN+8, X)
        k.e("buffer_store_dwordx4 %s, v3, s[12:15], 0 offen" % vr(IN+8))
        unpack8(k, X, IN+8)
        ln_stats(k, X, T, 6, 7, 1024)
        ln_apply(k, L, X, T)
        pack8(k, IN+12, L)
        k.e("buffer_store_dwordx4 %s, v3, s[32:35], 0 offen" % vr(IN+12))
    k.label("%s_end" % name)
    k.e("s_endpgm")
    k.end(112)

def gen_f(a, D=16):
    k = K(a, "f_kernel")
    k.e("s_cmp_ge_u32 s2, 256")
    k.e("s_cbranch_scc1 f_end")
    k.e("s_load_dwordx2 s[22:23], s[0:1], 96")
    wave_id(k, 24, 1)
    k.e("v_and_b32 v2, 63, v0")
    k.e("v_lshlrev_b32 v3, 4, v2")
    k.e("s_and_b32 s25, s2, 7")
    k.e("s_lshr_b32 s26, s2, 3")
    k.e("s_lshl_b32 s27, s25, 2")
    k.e("s_add_u32 s27, s27, s24")
    k.e("s_mul_i32 s27, s27, %d" % (486*1024))
    k.e("s_lshl_b32 s28, s26, 2")
    k.e("s_add_u32 s28, s28, s24")
    k.e("s_mul_i32 s28, s28, 18432")
    k.e("s_lshl_b32 s29, s24, 10")
    k.e("s_waitcnt lgkmcnt(0)")
    k.srd(8, 22, MAT, XN); k.srd(12, 22, WP_SZ, WP); k.srd(16, 22, 8*MAT, PART)
    RING = 64; ACC = 160; XV = 224
    HL = 73728
    def xreg(P, m):
        i = P*4 + m
        return ar(4*i) if i < 64 else vr(XV + 4*(i-64))
    def xdma(P):
        k.e("s_add_u32 m0, s29, %d" % (P*4096))
        k.e("buffer_load_dwordx4 v3, s[8:11], s28 offen lds", tag="x%d" % (P//6))
        k.e("s_add_u32 s28, s28, 1024")
    NFR = 486
    def wload(g):
        out = []
        if g < NFR:
            out.append(("buffer_load_dwordx4 %s, v3, s[12:15], s27 offen offset:%d" % (vr(RING + 4*(g % D)), (g % 4)*1024), "w%d" % g))
            if g % 4 == 3: out.append(("s_add_u32 s27, s27, 4096", None))
        return out
    for P in range(6): xdma(P)
    for g in range(D-1):
        for t, tag in wload(g): k.e(t, tag=tag)
    for P in range(6, 18): xdma(P)
    k.e("s_mul_i32 s30, s25, %d" % (4*486*1024))
    k.e("s_mul_i32 s31, s26, 62208")
    k.e("s_add_u32 s30, s30, s31")
    k.e("v_lshlrev_b32 v4, 7, v0")
    k.e("v_min_u32 v5, %d, v4" % (62208 - 32768 - 128))
    k.e("buffer_load_dword v6, v4, s[12:15], s30 offen", tag="pf")
    k.e("s_add_u32 s30, s30, 32768")
    k.e("buffer_load_dword v7, v5, s[12:15], s30 offen", tag="pf")
    k.e("s_mul_i32 s31, s24, 9")
    for par in range(2):
        k.e("s_add_u32 s32, s31, %d" % par)
        k.e("s_lshr_b32 s33, s32, 1")
        k.e("s_lshl_b32 s33, s33, 12")
        k.e("s_and_b32 s32, s32, 1")
        k.e("s_lshl_b32 s32, s32, 3")
        k.e("s_add_u32 s33, s33, s32")
        k.e("s_add_u32 s33, s33, %d" % HL)
        k.e("v_add_u32 v%d, s33, v3" % (8+par))
    k.e("v_add_u32 v10, %d, v3" % HL)
    k.e("v_add_u32 v11, %d, v3" % (HL + 36864))
    k.e("v_add_u32 v12, 36864, v3")
    k.e("s_mul_i32 s34, s25, %d" % MAT)
    k.e("s_mul_i32 s35, s26, %d" % (4*18432))
    k.e("s_add_u32 s34, s34, s35")
    k.e("s_lshr_b32 s35, s24, 1")
    k.e("s_mul_i32 s35, s35, 9216")
    k.e("s_add_u32 s34, s34, s35")
    k.e("s_and_b32 s35, s24, 1")
    k.e("s_lshl_b32 s36, s35, 3")
    k.e("s_add_u32 s36, s36, 4096")
    k.e("s_add_u32 s36, s36, s34")
    k.e("s_mul_i32 s35, s35, 5120")
    k.e("s_add_u32 s34, s34, s35")
    for m in range(4):
        k.e("v_add_u32 v%d, %d, v3" % (16+m, m*18432))
    def lds_rd(P, m, isH):
        o = (P*4 + m)*1024
        if isH: base = "v10" if o < 36864 else "v11"
        else: base = "v3" if o < 36864 else "v12"
        return "ds_read_b128 %s, %s offset:%d" % (xreg(P, m), base, o % 36864)
    def acc(s, half, m): return ACC + 32*s + 16*half + 4*m
    def epi1(s, t):
        ops = []
        for m in range(4):
            g = acc(s, 0, m); u = acc(s, 1, m)
            for i in range(4): ops.append("v_max_f32 v%d, 0, v%d" % (g+i, g+i))
            for i in range(4): ops.append("v_cvt_pk_bf16_f32 v%d, 0, v%d" % (u+i, u+i))
            for i in range(4): ops.append("v_cvt_pk_bf16_f32 v%d, 0, v%d" % (g+i, g+i))
            for i in range(4): ops.append("v_mul_f32 v%d, v%d, v%d" % (g+i, g+i, u+i))
            ops.append("v_cvt_pk_bf16_f32 v%d, v%d, v%d" % (u, g, g+1))
            ops.append("v_cvt_pk_bf16_f32 v%d, v%d, v%d" % (u+1, g+2, g+3))
            ops.append("ds_write_b64 v%d, %s offset:%d" % (8 + (t & 1), vr(u, 2), (t >> 1)*4096 + m*1024))
        return ops
    ST = 24
    def epi2(s, ps):
        ops = []
        for m in range(4):
            t0 = acc(s, 0, m); t1 = acc(s, 1, m); o = ST + 4*m
            ops.append("v_cvt_pk_bf16_f32 v%d, v%d, v%d" % (o, t0, t0+1))
            ops.append("v_cvt_pk_bf16_f32 v%d, v%d, v%d" % (o+1, t0+2, t0+3))
            if ps < 4:
                ops.append("v_cvt_pk_bf16_f32 v%d, v%d, v%d" % (o+2, t1, t1+1))
                ops.append("v_cvt_pk_bf16_f32 v%d, v%d, v%d" % (o+3, t1+2, t1+3))
                ops.append("buffer_store_dwordx4 %s, v%d, s[16:19], s34 offen offset:%d" % (vr(o), 16+m, ps*1024))
            else:
                ops.append("buffer_store_dwordx2 %s, v%d, s[16:19], s36 offen" % (vr(o, 2), 16+m))
        return ops
    g = [0]
    def body(s, nh, extra, fetch=None):
        extra = list(extra)
        AH = 2
        if fetch:
            for P in range(AH):
                for m in range(4): k.e(lds_rd(P, m, fetch == "h"), tag="b%d" % P)
        nm = 0
        for P in range(18):
            if fetch == "x" and P + AH in (6, 12):
                k.wait(vm="x%d" % ((P+AH)//6))
                k.e("s_barrier")
            rds = [lds_rd(P+AH, m, fetch == "h") for m in range(4)] if fetch and P + AH < 18 else []
            for h in range(nh):
                gg = g[0]
                k.wait(vm="w%d" % gg, lg=("b%d" % P) if fetch else None)
                wl = wload(gg + D - 1)
                for m in range(4):
                    c = vr(acc(s, h, m)) if P else "0"
                    k.e("v_mfma_f32_16x16x32_bf16 %s, %s, %s, %s" % (vr(acc(s, h, m)), vr(RING + 4*(gg % D)), xreg(P, m), c))
                    nm += 1
                    if m == 0 and wl: k.e(wl[0][0], tag=wl[0][1])
                    elif m == 3 and len(wl) > 1: k.e(wl[1][0])
                    elif rds and (m in (1, 2) or nh == 1): k.e(rds.pop(0), tag="b%d" % (P+AH))
                    elif extra and nm > 8 and m in (1, 2): k.e(extra.pop(0), tag="ex")
                    if extra and nm > 8 and m == 1 and len(extra) > 2*(18*nh - (nm+3)//4): k.e(extra.pop(0), tag="ex")
                g[0] += 1
            while rds: k.e(rds.pop(0), tag="b%d" % (P+AH))
        for o in extra: k.e(o, tag="ex")
    k.wait(vm="x0")
    k.e("s_barrier")
    body(0, 2, [], fetch="x")
    for t in range(1, 9):
        body(t & 1, 2, epi1((t-1) & 1, t-1))
    for o in epi1(0, 8): k.e(o)
    k.e("s_waitcnt lgkmcnt(0)")
    k.e("s_barrier")
    body(1, 2, [], fetch="h")
    for ps in range(1, 4):
        body((ps+1) & 1, 2, epi2(ps & 1, ps-1))
    body(1, 1, epi2(0, 3))
    for o in epi2(1, 4): k.e(o)
    k.label("f_end")
    k.e("s_endpgm")
    k.end(256, agpr=256)
    sys.stderr.write("f_kernel: %d instrs, %d nops\n" % (k.count, k.nops))

HEADER = """Generated by work/gen.py (own generator).  Pipeline: s1 (kv, weight prepack) -> s2 (long conv) -> s3 (LN rows)
 -> f (fused GLU MLP) -> s4 (reduce + LN rows) -> f -> s5 (reduce + output)"""
def main():
    a = Asm()
    gen_s1(a); gen_s2(a)
    RL = 2048 + 9*1024
    a.launch("s3_kernel", 256, 576, RL)
    a.launch("f_kernel", 256, 256, 147456)
    a.launch("s4_kernel", 256, 576, RL)
    a.launch("f_kernel", 256, 256, 147456)
    a.launch("s5_kernel", 256, 576, RL)
    gen_row(a, 3); gen_row(a, 4); gen_row(a, 5); gen_f(a)
    print(a.text(HEADER))
main()
```
